```python
import torch

def _softmax(x, axis=-1):
    return torch.softmax(x, dim=axis)
def _gelu(x):
    return torch.nn.functional.gelu(x, approximate="tanh")
def _silu(x):
    return torch.nn.functional.silu(x)
def _sigmoid(x):
    return torch.sigmoid(x)
def _layernorm(x, axis=-1, eps=1e-5):
    m = x.mean(dim=axis, keepdim=True)
    v = x.var(dim=axis, keepdim=True, unbiased=False)
    return (x - m) / torch.sqrt(v + eps)
def _scatter_add(tgt, idx, src, axis=0):
    return tgt.clone().index_add_(axis, idx, src)
def _segment_sum(src, seg, n):
    out = torch.zeros((n,) + src.shape[1:], dtype=src.dtype)
    return out.index_add_(0, seg, src)
def _pad(x, pw):
    flat = tuple(v for pair in reversed(pw) for v in pair)
    return torch.nn.functional.pad(x, flat)

kernel_name = 'standalone__cheap_equivariant_egnn__graph'

def setup_inputs():

    _w = (lambda a: (lambda t: t.to(torch.bfloat16) if t.is_floating_point() else t)(torch.as_tensor(a)))
    N, deg, D, De = 12500, 32, 128, max(4, 1)
    E = N * deg
    return {
        "h": _w((lambda *s: torch.randn(*s, dtype=torch.bfloat16) * 0.1)(N, D)),
        "pos": _w((lambda *s: torch.randn(*s, dtype=torch.bfloat16) * 0.8)(N, 3)),
        "e_attr": _w((lambda *s: torch.randn(*s, dtype=torch.bfloat16) * 0.8)(E, De)),
        "src": _w((lambda lo, hi, *s: torch.randint(lo, hi, s))(0, N, E).to(torch.int64)),
        "dst": _w((lambda lo, hi, *s: torch.randint(lo, hi, s))(0, N, E).to(torch.int64)),
        "w_e": _w(0.1 * (lambda *s: torch.randn(*s, dtype=torch.bfloat16) * 0.8)(2 * D + 1 + De, D)),
        "w_x": _w(0.1 * (lambda *s: torch.randn(*s, dtype=torch.bfloat16) * 0.1)(D, 1)),
        "w_h": _w(0.1 * (lambda *s: torch.randn(*s, dtype=torch.bfloat16) * 0.1)(2 * D, D)),
    }

def reference(h, pos, e_attr, src, dst, w_e, w_x, w_h):
    N, D = h.shape[0], h.shape[1]
    diff = pos[dst] - pos[src]
    dist2 = torch.sum(diff * diff, axis=-1, keepdims=True)
    e_in = torch.concatenate([h[dst], h[src], dist2, e_attr], axis=-1)
    m_ij = _silu(e_in @ w_e)
    coord_scale = m_ij @ w_x
    pos_new = pos + _segment_sum(diff * coord_scale, dst, N)
    m_i = _segment_sum(m_ij, dst, N)
    h_new = h + _silu(torch.concatenate([h, m_i], axis=-1) @ w_h)
    return h_new, pos_new
```

```python
import sys
def header(name):
    return f"""; @launch grid=(1,1,1) block=(512,1,1) lds=0
.amdgcn_target "amdgcn-amd-amdhsa--gfx950"
.text
.globl {name}
.p2align 8
.type {name},@function
{name}:
    s_load_dwordx2 s[4:5], s[0:1], 0
    v_lshrrev_b32 v1, 6, v0
    s_nop 0
    v_readfirstlane_b32 s6, v1
    s_lshl_b32 s7, s2, 4
    s_add_u32 s6, s6, s7       ; wg*16+wave
    s_mov_b32 s20, 0xbfb8aa3b  ; -log2e
    s_mov_b32 s21, 0xbfb8aa3b
    s_mov_b32 s22, 1.0
    s_mov_b32 s23, 1.0
"""
def init_regs(n=168):
    s = ""
    for i in range(2, n):
        s += f"    v_cvt_f32_u32 v{i}, v0\n"
    for i in range(2, n):
        s += f"    v_mul_f32 v{i}, 0x3a83126f, v{i}\n"
    for i in range(0, 64):
        s += f"    v_accvgpr_write_b32 a{i}, 0\n"
    return s
def wrap(name, body, iters=200, nvgpr=168, nagpr=64):
    s = header(name) + init_regs()
    s += f"""    s_waitcnt lgkmcnt(0)
    s_mov_b32 s10, {iters}
    s_barrier
    s_memtime s[8:9]
    s_waitcnt lgkmcnt(0)
.p2align 6
L_loop_{name}:
{body}
    s_sub_u32 s10, s10, 1
    s_cmp_lg_u32 s10, 0
    s_cbranch_scc1 L_loop_{name}
    s_nop 15
    s_nop 15
    s_memtime s[12:13]
    s_waitcnt lgkmcnt(0)
    s_sub_u32 s12, s12, s8
    v_mov_b32 v2, s12
    s_lshl_b32 s6, s6, 2
    v_mov_b32 v3, s6
    global_store_dword v3, v2, s[4:5]
    s_waitcnt vmcnt(0)
    s_endpgm
.section .rodata,"a"
.p2align 6
.amdhsa_kernel {name}
  .amdhsa_next_free_vgpr {nvgpr+nagpr}
  .amdhsa_next_free_sgpr 102
  .amdhsa_accum_offset {nvgpr}
  .amdhsa_group_segment_fixed_size 0
  .amdhsa_kernarg_size 32
  .amdhsa_user_sgpr_count 2
  .amdhsa_user_sgpr_kernarg_segment_ptr 1
  .amdhsa_system_sgpr_workgroup_id_x 1
.end_amdhsa_kernel
"""
    return s.replace("@IT@", str(iters))

def silu_pk(c0, c1, t0, t1):
    return [
      f"v_pk_mul_f32 v[{t0}:{t0+1}], v[{c0}:{c0+1}], s[20:21]",
      f"v_pk_mul_f32 v[{t1}:{t1+1}], v[{c1}:{c1+1}], s[20:21]",
      f"v_exp_f32 v{t0}, v{t0}", f"v_exp_f32 v{t0+1}, v{t0+1}", f"v_exp_f32 v{t1}, v{t1}", f"v_exp_f32 v{t1+1}, v{t1+1}",
      f"v_pk_add_f32 v[{t0}:{t0+1}], v[{t0}:{t0+1}], s[22:23]",
      f"v_pk_add_f32 v[{t1}:{t1+1}], v[{t1}:{t1+1}], s[22:23]",
      f"v_rcp_f32 v{t0}, v{t0}", f"v_rcp_f32 v{t0+1}, v{t0+1}", f"v_rcp_f32 v{t1}, v{t1}", f"v_rcp_f32 v{t1+1}, v{t1+1}",
      f"v_pk_mul_f32 v[{c0}:{c0+1}], v[{c0}:{c0+1}], v[{t0}:{t0+1}]",
      f"v_pk_mul_f32 v[{c1}:{c1+1}], v[{c1}:{c1+1}], v[{t1}:{t1+1}]",
      f"v_cvt_pk_bf16_f32 v{t0}, v{c0}, v{c0+1}",
      f"v_cvt_pk_bf16_f32 v{t1}, v{c1}, v{c1+1}",
    ]
def silu_pl(c0, c1, t0, t1):
    L=[]
    regs=[(c0,t0),(c0+1,t0+1),(c1,t1),(c1+1,t1+1)]
    for c,t in regs: L.append(f"v_mul_f32 v{t}, s20, v{c}")
    for c,t in regs: L.append(f"v_exp_f32 v{t}, v{t}")
    for c,t in regs: L.append(f"v_add_f32 v{t}, 1.0, v{t}")
    for c,t in regs: L.append(f"v_rcp_f32 v{t}, v{t}")
    for c,t in regs: L.append(f"v_mul_f32 v{c}, v{c}, v{t}")
    L.append(f"v_cvt_pk_bf16_f32 v{t0}, v{c0}, v{c0+1}")
    L.append(f"v_cvt_pk_bf16_f32 v{t1}, v{c1}, v{c1+1}")
    return L
def mfma(i):
    a=(i%4)*16
    return f"v_mfma_f32_32x32x16_bf16 a[{a}:{a+15}], v[4:7], v[8:11], a[{a}:{a+15}]"

def body(mode):
    L=[]
    silu = silu_pk if 'pk' in mode else silu_pl
    groups=[silu(16+4*g, 18+4*g, 100+4*(g%8), 102+4*(g%8)) for g in range(16)]
    if mode.startswith('silu'):
        for g in groups: L+=g
    elif mode.startswith('mfma'):
        for i in range(48): L.append(mfma(i))
    elif mode.startswith('sep'):
        for i in range(48): L.append(mfma(i))
        for g in groups: L+=g
    elif mode.startswith('mix'):
        for gi,g in enumerate(groups):
            n=len(g)
            pos=[0, n//3, 2*n//3]
            for j,ins in enumerate(g):
                if j in pos: L.append(mfma(gi*3+pos.index(j)))
                L.append(ins)
    return "\n".join("    "+x for x in L)
if __name__=="__main__":
    mode=sys.argv[1]
    nv = 128 if len(sys.argv)>2 and sys.argv[2]=='small' else 256
    open(f"mb_{mode}.s","w").write(wrap("mb_kernel", body(mode)))
```

```python
import sys
from gen_mb import *
def wrap2(name, bodyA, bodyB, iters=200, nvgpr=168, nagpr=64):
    s = header(name) + init_regs()
    s += f"""    s_waitcnt lgkmcnt(0)
    s_mov_b32 s10, {iters}
    s_barrier
    s_memtime s[8:9]
    s_waitcnt lgkmcnt(0)
    s_and_b32 s30, s6, 4
    s_cmp_lg_u32 s30, 0
    s_cbranch_scc1 L_loopB
.p2align 6
L_loopA:
{bodyA}
    s_sub_u32 s10, s10, 1
    s_cmp_lg_u32 s10, 0
    s_cbranch_scc1 L_loopA
    s_branch L_done
.p2align 6
L_loopB:
{bodyB}
    s_sub_u32 s10, s10, 1
    s_cmp_lg_u32 s10, 0
    s_cbranch_scc1 L_loopB
L_done:
    s_nop 15
    s_nop 15
    s_memtime s[12:13]
    s_waitcnt lgkmcnt(0)
    s_sub_u32 s12, s12, s8
    v_mov_b32 v2, s12
    s_lshl_b32 s6, s6, 2
    v_mov_b32 v3, s6
    global_store_dword v3, v2, s[4:5]
    s_waitcnt vmcnt(0)
    s_endpgm
.section .rodata,"a"
.p2align 6
.amdhsa_kernel {name}
  .amdhsa_next_free_vgpr {nvgpr+nagpr}
  .amdhsa_next_free_sgpr 102
  .amdhsa_accum_offset {nvgpr}
  .amdhsa_group_segment_fixed_size 0
  .amdhsa_kernarg_size 32
  .amdhsa_user_sgpr_count 2
  .amdhsa_user_sgpr_kernarg_segment_ptr 1
  .amdhsa_system_sgpr_workgroup_id_x 1
.end_amdhsa_kernel
"""
    return s
def stream(kind, n):
    L=[]
    for i in range(n):
        r=16+(i%64)
        if kind=='exp': L.append(f"v_exp_f32 v{r}, v{r}")
        elif kind=='mul': L.append(f"v_mul_f32 v{r}, v{r}, v10")
        elif kind=='muls': L.append(f"v_mul_f32 v{r}, s20, v{r}")
        elif kind=='addc': L.append(f"v_add_f32 v{r}, 1.0, v{r}")
        elif kind=='fma': L.append(f"v_fma_f32 v{r}, v{r}, v10, v11")
        elif kind=='cvt': L.append(f"v_cvt_pk_bf16_f32 v{r}, v{r}, v10")
        elif kind=='and': L.append(f"v_and_b32 v{r}, 0xffff0000, v{r}")
        elif kind=='lsh': L.append(f"v_lshlrev_b32 v{r}, 16, v{r}")
        elif kind=='mov': L.append(f"v_mov_b32 v{r}, v10")
        elif kind=='pk': L.append(f"v_pk_mul_f32 v[{16+2*(i%32)}:{17+2*(i%32)}], v[{16+2*(i%32)}:{17+2*(i%32)}], v[10:11]")
        elif kind=='mfma': L.append(mfma(i))
        elif kind=='nop': L.append("s_nop 0")
    return "\n".join("    "+x for x in L)
if __name__=="__main__":
    a,na,b,nb=sys.argv[1],int(sys.argv[2]),sys.argv[3],int(sys.argv[4])
    open(f"mb2_{a}_{b}.s","w").write(wrap2("mb_kernel", stream(a,na), stream(b,nb)))
```
